```python
import torch

def _softmax(x, axis=-1):
    return torch.softmax(x, dim=axis)
def _gelu(x):
    return torch.nn.functional.gelu(x, approximate="tanh")
def _silu(x):
    return torch.nn.functional.silu(x)
def _sigmoid(x):
    return torch.sigmoid(x)
def _layernorm(x, axis=-1, eps=1e-5):
    m = x.mean(dim=axis, keepdim=True)
    v = x.var(dim=axis, keepdim=True, unbiased=False)
    return (x - m) / torch.sqrt(v + eps)
def _scatter_add(tgt, idx, src, axis=0):
    return tgt.clone().index_add_(axis, idx, src)
def _segment_sum(src, seg, n):
    out = torch.zeros((n,) + src.shape[1:], dtype=src.dtype)
    return out.index_add_(0, seg, src)
def _pad(x, pw):
    flat = tuple(v for pair in reversed(pw) for v in pair)
    return torch.nn.functional.pad(x, flat)

kernel_name = 'standalone__attention_interact_autoint__recsys'

def setup_inputs():

    _w = (lambda a: (lambda t: t.to(torch.bfloat16) if t.is_floating_point() else t)(torch.as_tensor(a)))
    B, F = 4096, 26
    D = max(2, (128 // 2) * 2)
    H = 2
    Dh = D // H
    return {
        "e": _w((lambda *s: torch.randn(*s, dtype=torch.bfloat16) * 0.05)(B, F, D).to(float)),
        "wq": _w((lambda *s: torch.randn(*s, dtype=torch.bfloat16) * 1.6)(H, D, Dh).to(float)),
        "wk": _w((lambda *s: torch.randn(*s, dtype=torch.bfloat16) * 1.6)(H, D, Dh).to(float)),
        "wv": _w((lambda *s: torch.randn(*s, dtype=torch.bfloat16) * 0.05)(H, D, Dh).to(float)),
        "wres": _w((lambda *s: torch.randn(*s, dtype=torch.bfloat16) * 0.05)(D, D).to(float)),
    }

def reference(e, wq, wk, wv, wres):
    H, D, Dh = wq.shape[0], wq.shape[1], wq.shape[2]
    B, F = e.shape[0], e.shape[1]
    q = torch.einsum('bfd,hdk->bhfk', e, wq)
    k = torch.einsum('bfd,hdk->bhfk', e, wk)
    v = torch.einsum('bfd,hdk->bhfk', e, wv)
    scale = float(Dh) ** -0.5
    scores = torch.einsum('bhfk,bhgk->bhfg', q, k) * scale
    attn = _softmax(scores, axis=-1)
    attn = (lambda x, dt: x.to(dt))(attn, v.dtype)
    ctx = torch.einsum('bhfg,bhgk->bhfk', attn, v)
    ctx = (lambda x, *d: x.permute(*d))(ctx, 0, 2, 1, 3).reshape(B, F, H * Dh)
    res = torch.einsum('bfd,de->bfe', e, wres)
    out = ctx + res
    mask = (lambda x, dt: x.to(dt))(out > 0, out.dtype)
    return out * mask
```

```python
import sys
NAME = "standalone__attention_interact_autoint__recsys"
NS = 8
FILL = int(sys.argv[1]) if len(sys.argv) > 1 else 5

class I:
    def __init__(s, txt, kind, rd=(), wr=(), srcc=()):
        s.txt, s.kind, s.rd, s.wr, s.srcc = txt, kind, set(rd), set(wr), set(srcc)
def R(p, lo, n): return [f"{p}{i}" for i in range(lo, lo+n)]
def rng(p, lo, n): return f"{p}[{lo}:{lo+n-1}]" if n > 1 else f"{p}{lo}"

def mfma(d, a, b, c):
    ctxt = "0" if c is None else rng("v", c, 16)
    rd = R(a[0], a[1], 4) + R(b[0], b[1], 4)
    sc = [] if c is None else R("v", c, 16)
    return I(f"v_mfma_f32_32x32x16_bf16 {rng('v',d,16)}, {rng(a[0],a[1],4)}, {rng(b[0],b[1],4)}, {ctxt}",
             "mfma", rd, R("v", d, 16), sc)
def valu(txt, rd, wr, kind="valu"): return I(txt, kind, [f"v{x}" for x in rd], [f"v{x}" for x in wr])
def other(txt, rd=(), wr=()): return I(txt, "other", [f"v{x}" for x in rd], [f"v{x}" for x in wr])

EA, EB = 0, 32
AQ = 64; AV = 64; AK = 96; AS = 96; AR = 128
PQ, PK, PV_, PP = 160, 176, 192, 208
PO = 216
VE, VO, VNI = 232, 233, 234
T0, T1, T2, T3, VM, VS = 235, 236, 237, 238, 239, 240
WQ, WK, WV, WR = 0, 64, 128, 192

def proj(acc, w, e, vform):
    out = []
    for T in range(2):
        for kb in range(8):
            wa = ("a", w + T*32 + kb*4); ee = ("v", e + kb*4)
            a, b = (ee, wa) if vform else (wa, ee)
            out.append(mfma(acc + T*16, a, b, None if kb == 0 else acc + T*16))
    return out
def pack(dst, acc, n=16):
    return [valu(f"v_cvt_pk_bf16_f32 v{dst+j}, v{acc+2*j}, v{acc+2*j+1}", [acc+2*j, acc+2*j+1], [dst+j]) for j in range(n)]
def s_mfma():
    return [mfma(AS, ("v", PK + 4*k), ("v", PQ + 4*k), None if k == 0 else AS) for k in range(4)]
def pv_mfma():
    out = []
    for T in range(2):
        for kb in range(2):
            out.append(mfma(AR + T*16, ("v", PV_ + T*8 + kb*4), ("v", PP + kb*4), AR + T*16))
    return out
def softmax():
    s = lambda i: AS + i
    o = []
    for i in (12, 13):
        o.append(valu(f"v_cndmask_b32 v{s(i)}, v{s(i)}, v{VNI}, s[40:41]", [s(i), VNI], [s(i)]))
    def mx3(d, a, b, c): o.append(valu(f"v_max3_f32 v{d}, v{a}, v{b}, v{c}", [a, b, c], [d]))
    mx3(T0, s(0), s(1), s(2)); mx3(T1, s(3), s(4), s(5)); mx3(T2, s(6), s(7), s(8)); mx3(T3, s(9), s(10), s(11))
    mx3(T0, T0, s(12), s(13)); mx3(T1, T1, T2, T3)
    o.append(valu(f"v_max_f32 v{VM}, v{T0}, v{T1}", [T0, T1], [VM]))
    o.append(valu(f"v_mov_b32 v{T2}, v{VM}", [VM], [T2]))
    o.append(valu(f"v_permlane32_swap_b32 v{VM}, v{T2}", [VM, T2], [VM, T2], "perm"))
    o.append(valu(f"v_max_f32 v{VM}, v{VM}, v{T2}", [VM, T2], [VM]))
    o.append(valu(f"v_mul_f32 v{VM}, s42, v{VM}", [VM], [VM]))
    for i in range(14):
        o.append(valu(f"v_fma_f32 v{s(i)}, v{s(i)}, s42, -v{VM}", [s(i), VM], [s(i)]))
        o.append(valu(f"v_exp_f32 v{s(i)}, v{s(i)}", [s(i)], [s(i)], "trans"))
    def add(d, a, b): o.append(valu(f"v_add_f32 v{d}, v{a}, v{b}", [a, b], [d]))
    add(T0, s(0), s(1)); add(T1, s(2), s(3)); add(T2, s(4), s(5)); add(T3, s(6), s(7))
    add(T0, T0, s(8)); add(T1, T1, s(9)); add(T2, T2, s(10)); add(T3, T3, s(11))
    add(T0, T0, s(12)); add(T1, T1, s(13)); add(T0, T0, T2); add(T1, T1, T3); add(VS, T0, T1)
    o.append(valu(f"v_mov_b32 v{T2}, v{VS}", [VS], [T2]))
    o.append(valu(f"v_permlane32_swap_b32 v{VS}, v{T2}", [VS, T2], [VS, T2], "perm"))
    add(VS, VS, T2)
    o.append(valu(f"v_rcp_f32 v{VS}, v{VS}", [VS], [VS], "trans"))
    for i in range(14):
        o.append(valu(f"v_mul_f32 v{s(i)}, v{VS}, v{s(i)}", [s(i), VS], [s(i)]))
    o += pack(PP, AS, 7)
    return o
def epilogue(soff):
    o = pack(PO, AR, 16)
    for j in range(16):
        o.append(valu(f"v_pk_max_i16 v{PO+j}, v{PO+j}, 0", [PO+j], [PO+j]))
    for q in range(4):
        b = PO + q*4
        o.append(valu(f"v_permlane32_swap_b32 v{b}, v{b+2}", [b, b+2], [b, b+2], "perm"))
        o.append(valu(f"v_permlane32_swap_b32 v{b+1}, v{b+3}", [b+1, b+3], [b+1, b+3], "perm"))
        o.append(I(f"buffer_store_dwordx4 v[{b}:{b+3}], v{VO}, s[24:27], {soff} offen offset:{q*32}", "store", R("v", b, 4) + [f"v{VO}"]))
    return o
def eloads(e, soff):
    return [I(f"buffer_load_dwordx4 v[{e+4*kb}:{e+4*kb+3}], v{VE}, s[8:11], {soff} offen offset:{kb*32}", "load", [f"v{VE}"], R("v", e+4*kb, 4)) for kb in range(8)]

def weave(mf, fill, skip=0):
    out = []; fill = list(fill)
    for n, m in enumerate(mf):
        out.append(m)
        if n >= skip:
            cost = 0
            while fill and cost < FILL:
                f = fill.pop(0); out.append(f); cost += 2 if f.kind == "trans" else 1
    return out, fill

body = []
E = lambda s: EA if s % 2 == 0 else EB
body += proj(AQ, WQ, E(0), False)
left = []
for s in range(NS):
    pre = []
    if s + 1 < NS: pre = eloads(E(s+1), f"s{48+s+1}")
    o, left = weave(proj(AK, WK, E(s), False), left + pre + pack(PQ, AQ) + (epilogue(f"s{48+s-1}") if s else []), 2 if not left else 0); body += o
    o, left = weave(proj(AV, WV, E(s), True), left + pack(PK, AK), 2); body += o
    body += left; left = []
    o, left = weave(s_mfma(), pack(PV_, AV), 0); body += o
    body += left; left = []
    o, left = weave(proj(AR, WR, E(s), False), softmax(), 1); body += o
    if s + 1 < NS:
        body.append(other("s_waitcnt vmcnt(4)" if s else "s_waitcnt vmcnt(0)"))
        o, left = weave(proj(AQ, WQ, E(s+1), False), left, 0); body += o
    body += left; left = []
    body += pv_mfma()
body += epilogue(f"s{48+NS-1}")

def need(p, c):
    w = 0
    if p.kind == "mfma":
        if c.kind == "mfma":
            if p.wr & c.rd: w = max(w, 12)
            if p.wr & c.srcc and p.wr != c.srcc: w = max(w, 10)
        elif p.wr & (c.rd | c.wr): w = max(w, 12)
        if c.kind != "mfma" and p.srcc & c.wr: w = max(w, 7)
    elif p.kind in ("valu", "trans", "perm"):
        if c.kind == "mfma" and p.wr & (c.rd | c.srcc): w = max(w, 2)
        if c.kind == "perm" and p.wr & c.rd: w = max(w, 2)
        if p.kind == "trans" and c.kind in ("valu", "perm") and p.wr & c.rd: w = max(w, 1)
    elif p.kind == "store":
        if c.kind != "store" and p.rd & c.wr: w = max(w, 2)
    return w
fin = []
for ins in body:
    pad = 0; dist = 0
    for prev, st in reversed(fin[-16:]):
        n = need(prev, ins) if prev is not None else 0
        if n > dist: pad = max(pad, n - dist)
        dist += st
        if dist >= 12: break
    if pad:
        fin.append((other(f"s_nop {pad-1}"), pad))
    fin.append((ins, 1))

pro = f"""; @launch grid=(256,1,1) block=(256,1,1) lds=131072
.amdgcn_target "amdgcn-amd-amdhsa--gfx950"
.text
.globl {NAME}_kernel
.p2align 8
.type {NAME}_kernel,@function
{NAME}_kernel:
    s_cmp_ge_u32 s2, 256
    s_cbranch_scc1 L_done
    s_load_dwordx8 s[28:35], s[0:1], 0
    s_load_dwordx4 s[36:39], s[0:1], 32
    v_lshlrev_b32 v1, 4, v0                 ; tid*16
    v_lshrrev_b32 v2, 6, v0
    s_nop 0
    v_readfirstlane_b32 s43, v2
    s_waitcnt lgkmcnt(0)
    s_mov_b32 s8, s28
    s_and_b32 s9, s29, 0xffff
    s_mov_b32 s10, 27262976
    s_mov_b32 s11, 0x20000
    s_mov_b32 s24, s38
    s_and_b32 s25, s39, 0xffff
    s_mov_b32 s26, 27262976
    s_mov_b32 s27, 0x20000
    s_mov_b32 s12, s30
    s_and_b32 s13, s31, 0xffff
    s_mov_b32 s14, 32768
    s_mov_b32 s15, 0x20000
    s_mov_b32 s16, s32
    s_and_b32 s17, s33, 0xffff
    s_mov_b32 s18, 32768
    s_mov_b32 s19, 0x20000
    s_mov_b32 s20, s34
    s_and_b32 s21, s35, 0xffff
    s_mov_b32 s22, 32768
    s_mov_b32 s23, 0x20000
    s_mov_b32 s44, s36
    s_and_b32 s45, s37, 0xffff
    s_mov_b32 s46, 32768
    s_mov_b32 s47, 0x20000
"""
L = []
srds = ["s[12:15]", "s[16:19]", "s[20:23]", "s[44:47]"]
for m in range(4):
    for i in range(8):
        L.append(f"    buffer_load_dwordx4 v[{64+(m*8+i)*4}:{64+(m*8+i)*4+3}], v1, {srds[m]}, 0 offen offset:0" if i == 0 else
                 f"    buffer_load_dwordx4 v[{64+(m*8+i)*4}:{64+(m*8+i)*4+3}], v1, {srds[m]}, s{60+i} offen")
pro2 = "".join(f"    s_mov_b32 s{60+i}, {i*4096}\n" for i in range(1, 8))
pro2 += "\n".join(L) + "\n"
pro2 += f"""    s_lshr_b32 s4, s43, 1                   ; pair
    s_and_b32 s5, s43, 1                    ; half
    s_lshl_b32 s6, s2, 1
    s_add_u32 s6, s6, s4
    s_mul_i32 s6, s6, {NS*6656}
"""
for i in range(NS): pro2 += f"    s_add_u32 s{48+i}, s6, {i*6656}\n"
pro2 += f"""    v_and_b32 v2, 63, v0                    ; lane
    v_and_b32 v3, 31, v2                    ; f
    v_lshrrev_b32 v4, 5, v2                 ; h
    v_lshlrev_b32 v5, 8, v3
    v_lshl_add_u32 v{VE}, v4, 4, v5
    s_lshl_b32 s7, s5, 7
    v_add_u32 v{VO}, s7, v{VE}
    v_mov_b32 v6, 0x40000000
    v_cmp_gt_u32 vcc, 26, v3
    s_nop 1
    v_cndmask_b32 v{VO}, v6, v{VO}, vcc
    v_mov_b32 v{VNI}, 0xff800000
    v_mov_b32 v{PP+7}, 0
    s_mov_b32 s40, 0
    s_mov_b32 s41, -1
    s_mov_b32 s42, 0x3e38aa3b
"""
for m in range(4):
    pro2 += f"    s_waitcnt vmcnt({24-m*8})\n"
    for i in range(8):
        pro2 += f"    ds_write_b128 v1, v[{64+(m*8+i)*4}:{64+(m*8+i)*4+3}] offset:{0}\n".replace("offset:0", f"offset:{(m%2)*32768+i*4096}") if m < 2 else ""
    if m == 1: pro2 += "    v_add_u32 v7, 0x10000, v1\n"
    if m >= 2:
        for i in range(8):
            pro2 += f"    ds_write_b128 v7, v[{64+(m*8+i)*4}:{64+(m*8+i)*4+3}] offset:{(m%2)*32768+i*4096}\n"
pro2 += f"""    v_lshrrev_b32 v8, 4, v2                 ; group
    v_and_b32 v9, 1, v8                     ; nhalf
    v_lshrrev_b32 v8, 1, v8                 ; h
    v_bfe_u32 v10, v2, 2, 2                 ; r
    v_and_b32 v11, 3, v2                    ; c
    v_lshl_add_u32 v10, v8, 3, v10          ; row = h*8+r
    v_lshlrev_b32 v11, 3, v11
    v_lshl_add_u32 v11, v9, 5, v11
    v_lshl_add_u32 v12, v10, 7, v11         ; pitch 128
    s_lshl_b32 s7, s5, 14
    v_add_u32 v12, s7, v12
    v_add_u32 v13, 0x10000, v12             ; wv
    v_lshl_add_u32 v14, v10, 8, v11         ; pitch 256
    s_lshl_b32 s7, s5, 7
    s_add_u32 s7, s7, 0x18000
    v_add_u32 v14, s7, v14
    s_waitcnt lgkmcnt(0)
    s_barrier
"""
for (w, va, base, pitch) in ((WQ, 12, 0, 128), (WK, 12, 32768, 128), (WV, 13, 0, 128), (WR, 14, 0, 256)):
    for T in range(2):
        for kb in range(8):
            for sub in range(2):
                a = w + T*32 + kb*4 + sub*2
                pro2 += f"    ds_read_b64_tr_b16 a[{a}:{a+1}], v{va} offset:{base+(kb*16+sub*4)*pitch+T*64}\n"
pro2 += "\n".join("    " + i.txt for i in eloads(EA, "s48")) + "\n"
pro2 += "    s_waitcnt vmcnt(0) lgkmcnt(0)\n"
end = f"""L_done:
    s_endpgm
.section .rodata,"a"
.p2align 6
.amdhsa_kernel {NAME}_kernel
  .amdhsa_next_free_vgpr 512
  .amdhsa_next_free_sgpr 102
  .amdhsa_accum_offset 256
  .amdhsa_group_segment_fixed_size 0
  .amdhsa_kernarg_size 64
  .amdhsa_user_sgpr_count 2
  .amdhsa_user_sgpr_kernarg_segment_ptr 1
  .amdhsa_system_sgpr_workgroup_id_x 1
.end_amdhsa_kernel
"""
open(f"cdna_kernels/{NAME}.s", "w").write(pro + pro2 + "".join("    " + i.txt + "\n" for i, _ in fin) + end)
print(len(fin), "instrs; nops:", sum(1 for i, _ in fin if i.txt.startswith("s_nop")))
```

```python
import sys
NAME = "standalone__attention_interact_autoint__recsys"
NS = 8
FILL = int(sys.argv[1]) if len(sys.argv) > 1 else 5

class I:
    def __init__(s, txt, kind, rd=(), wr=(), srcc=()):
        s.txt, s.kind, s.rd, s.wr, s.srcc = txt, kind, set(rd), set(wr), set(srcc)
def R(p, lo, n): return [f"{p}{i}" for i in range(lo, lo+n)]
def rng(p, lo, n): return f"{p}[{lo}:{lo+n-1}]" if n > 1 else f"{p}{lo}"

def mfma(d, a, b, c):
    ctxt = "0" if c is None else rng("v", c, 16)
    rd = R(a[0], a[1], 4) + R(b[0], b[1], 4)
    sc = [] if c is None else R("v", c, 16)
    return I(f"v_mfma_f32_32x32x16_bf16 {rng('v',d,16)}, {rng(a[0],a[1],4)}, {rng(b[0],b[1],4)}, {ctxt}",
             "mfma", rd, R("v", d, 16), sc)
def valu(txt, rd, wr, kind="valu"): return I(txt, kind, [f"v{x}" for x in rd], [f"v{x}" for x in wr])
def other(txt, rd=(), wr=()): return I(txt, "other", [f"v{x}" for x in rd], [f"v{x}" for x in wr])

EA, EB = 0, 32
AQ = 64; AV = 64; AK = 96; AS = 96; AR = 128
PQ, PK, PV_, PP = 160, 176, 192, 208
PO = 216
VE, VO, VNI = 232, 233, 234
T0, T1, T2, T3, VM, VS = 235, 236, 237, 238, 239, 240
WQ, WK, WV, WR = 0, 64, 128, 192

def proj(acc, w, e, vform):
    out = []
    for T in range(2):
        for kb in range(8):
            wa = ("a", w + T*32 + kb*4); ee = ("v", e + kb*4)
            a, b = (ee, wa) if vform else (wa, ee)
            out.append(mfma(acc + T*16, a, b, None if kb == 0 else acc + T*16))
    return out
def pack(dst, acc, n=16):
    return [valu(f"v_cvt_pk_bf16_f32 v{dst+j}, v{acc+2*j}, v{acc+2*j+1}", [acc+2*j, acc+2*j+1], [dst+j]) for j in range(n)]
def s_mfma():
    return [mfma(AS, ("v", PK + 4*k), ("v", PQ + 4*k), None if k == 0 else AS) for k in range(4)]
def pv_mfma():
    out = []
    for T in range(2):
        for kb in range(2):
            out.append(mfma(AR + T*16, ("v", PV_ + T*8 + kb*4), ("v", PP + kb*4), AR + T*16))
    return out
def softmax():
    s = lambda i: AS + i
    o = []
    for i in (12, 13):
        o.append(valu(f"v_cndmask_b32 v{s(i)}, v{s(i)}, v{VNI}, s[40:41]", [s(i), VNI], [s(i)]))
    def mx3(d, a, b, c): o.append(valu(f"v_max3_f32 v{d}, v{a}, v{b}, v{c}", [a, b, c], [d]))
    mx3(T0, s(0), s(1), s(2)); mx3(T1, s(3), s(4), s(5)); mx3(T2, s(6), s(7), s(8)); mx3(T3, s(9), s(10), s(11))
    mx3(T0, T0, s(12), s(13)); mx3(T1, T1, T2, T3)
    o.append(valu(f"v_max_f32 v{VM}, v{T0}, v{T1}", [T0, T1], [VM]))
    o.append(valu(f"v_mov_b32 v{T2}, v{VM}", [VM], [T2]))
    o.append(valu(f"v_permlane32_swap_b32 v{VM}, v{T2}", [VM, T2], [VM, T2], "perm"))
    o.append(valu(f"v_max_f32 v{VM}, v{VM}, v{T2}", [VM, T2], [VM]))
    o.append(valu(f"v_mul_f32 v{VM}, s42, v{VM}", [VM], [VM]))
    for i in range(14):
        o.append(valu(f"v_fma_f32 v{s(i)}, v{s(i)}, s42, -v{VM}", [s(i), VM], [s(i)]))
        o.append(valu(f"v_exp_f32 v{s(i)}, v{s(i)}", [s(i)], [s(i)], "trans"))
    def add(d, a, b): o.append(valu(f"v_add_f32 v{d}, v{a}, v{b}", [a, b], [d]))
    add(T0, s(0), s(1)); add(T1, s(2), s(3)); add(T2, s(4), s(5)); add(T3, s(6), s(7))
    add(T0, T0, s(8)); add(T1, T1, s(9)); add(T2, T2, s(10)); add(T3, T3, s(11))
    add(T0, T0, s(12)); add(T1, T1, s(13)); add(T0, T0, T2); add(T1, T1, T3); add(VS, T0, T1)
    o.append(valu(f"v_mov_b32 v{T2}, v{VS}", [VS], [T2]))
    o.append(valu(f"v_permlane32_swap_b32 v{VS}, v{T2}", [VS, T2], [VS, T2], "perm"))
    add(VS, VS, T2)
    o.append(valu(f"v_rcp_f32 v{VS}, v{VS}", [VS], [VS], "trans"))
    for i in range(14):
        o.append(valu(f"v_mul_f32 v{s(i)}, v{VS}, v{s(i)}", [s(i), VS], [s(i)]))
    o += pack(PP, AS, 7)
    return o
def epilogue(soff):
    o = pack(PO, AR, 16)
    for j in range(16):
        o.append(valu(f"v_pk_max_i16 v{PO+j}, v{PO+j}, 0", [PO+j], [PO+j]))
    for q in range(4):
        b = PO + q*4
        o.append(valu(f"v_permlane32_swap_b32 v{b}, v{b+2}", [b, b+2], [b, b+2], "perm"))
        o.append(valu(f"v_permlane32_swap_b32 v{b+1}, v{b+3}", [b+1, b+3], [b+1, b+3], "perm"))
        o.append(I(f"buffer_store_dwordx4 v[{b}:{b+3}], v{VO}, s[24:27], {soff} offen offset:{q*32}", "store", R("v", b, 4) + [f"v{VO}"]))
    return o
def eloads(e, soff):
    return [I(f"buffer_load_dwordx4 v[{e+4*kb}:{e+4*kb+3}], v{VE}, s[8:11], {soff} offen offset:{kb*32}", "load", [f"v{VE}"], R("v", e+4*kb, 4)) for kb in range(8)]

def weave(mf, fill, skip=0):
    out = []; fill = list(fill)
    for n, m in enumerate(mf):
        out.append(m)
        if n >= skip:
            cost = 0
            while fill and cost < FILL:
                f = fill.pop(0); out.append(f); cost += 2 if f.kind == "trans" else 1
    return out, fill

E = lambda s: EA if s % 2 == 0 else EB
def one(s):
    body = []
    o, left = weave(proj(AK, WK, E(s), False), eloads(E(s+1), "s51") + pack(PQ, AQ) + epilogue("s52"), 2); body += o
    o, left = weave(proj(AV, WV, E(s), True), left + pack(PK, AK), 2); body += o
    body += left
    o, left = weave(s_mfma(), pack(PV_, AV), 0); body += o
    body += left
    o, left = weave(proj(AR, WR, E(s), False), softmax(), 1); body += o
    body.append(other("s_waitcnt vmcnt(4)"))
    o, left = weave(proj(AQ, WQ, E(s+1), False), left, 0); body += o
    body += left
    body += pv_mfma()
    body += [other("s_mov_b32 s52, s50"), other("s_mov_b32 s50, s51"), other("s_add_u32 s51, s51, 6656")]
    return body
head = proj(AQ, WQ, E(0), False)
loop = one(0) + one(1)
tail = epilogue("s52")
MARK = [other("L_loop:"), other("s_sub_u32 s53, s53, 1"), other("s_cmp_lg_u32 s53, 0"), other("s_cbranch_scc1 L_loop")]
body = head + loop + [MARK[0]] + loop + MARK[1:] + tail
def need(p, c):
    w = 0
    if p.kind == "mfma":
        if c.kind == "mfma":
            if p.wr & c.rd: w = max(w, 12)
            if p.wr & c.srcc and p.wr != c.srcc: w = max(w, 10)
        elif p.wr & (c.rd | c.wr): w = max(w, 12)
        if c.kind != "mfma" and p.srcc & c.wr: w = max(w, 7)
    elif p.kind in ("valu", "trans", "perm"):
        if c.kind == "mfma" and p.wr & (c.rd | c.srcc): w = max(w, 2)
        if c.kind == "perm" and p.wr & c.rd: w = max(w, 2)
        if p.kind == "trans" and c.kind in ("valu", "perm") and p.wr & c.rd: w = max(w, 1)
    elif p.kind == "store":
        if c.kind != "store" and p.rd & c.wr: w = max(w, 2)
    return w
fin = []
for ins in body:
    pad = 0; dist = 0
    for prev, st in reversed(fin[-16:]):
        n = need(prev, ins) if prev is not None else 0
        if n > dist: pad = max(pad, n - dist)
        dist += st
        if dist >= 12: break
    if pad:
        fin.append((other(f"s_nop {pad-1}"), pad))
    fin.append((ins, 1))

i0 = [k for k, (i, _) in enumerate(fin) if i is MARK[0]][0]
nh = [k for k, (i, _) in enumerate(fin) if i is loop[0]][0]
fin = fin[:nh] + [(other("s_nop 7"), 8)] + fin[i0:]
pro = f"""; @launch grid=(256,1,1) block=(256,1,1) lds=131072
.amdgcn_target "amdgcn-amd-amdhsa--gfx950"
.text
.globl {NAME}_kernel
.p2align 8
.type {NAME}_kernel,@function
{NAME}_kernel:
    s_cmp_ge_u32 s2, 256
    s_cbranch_scc1 L_done
    s_load_dwordx8 s[28:35], s[0:1], 0
    s_load_dwordx4 s[36:39], s[0:1], 32
    v_lshlrev_b32 v1, 4, v0                 ; tid*16
    v_lshrrev_b32 v2, 6, v0
    s_nop 0
    v_readfirstlane_b32 s43, v2
    s_waitcnt lgkmcnt(0)
    s_mov_b32 s8, s28
    s_and_b32 s9, s29, 0xffff
    s_mov_b32 s10, 27262976
    s_mov_b32 s11, 0x20000
    s_mov_b32 s24, s38
    s_and_b32 s25, s39, 0xffff
    s_mov_b32 s26, 27262976
    s_mov_b32 s27, 0x20000
    s_mov_b32 s12, s30
    s_and_b32 s13, s31, 0xffff
    s_mov_b32 s14, 32768
    s_mov_b32 s15, 0x20000
    s_mov_b32 s16, s32
    s_and_b32 s17, s33, 0xffff
    s_mov_b32 s18, 32768
    s_mov_b32 s19, 0x20000
    s_mov_b32 s20, s34
    s_and_b32 s21, s35, 0xffff
    s_mov_b32 s22, 32768
    s_mov_b32 s23, 0x20000
    s_mov_b32 s44, s36
    s_and_b32 s45, s37, 0xffff
    s_mov_b32 s46, 32768
    s_mov_b32 s47, 0x20000
"""
L = []
srds = ["s[12:15]", "s[16:19]", "s[20:23]", "s[44:47]"]
for m in range(4):
    for i in range(8):
        L.append(f"    buffer_load_dwordx4 v[{64+(m*8+i)*4}:{64+(m*8+i)*4+3}], v1, {srds[m]}, 0 offen offset:0" if i == 0 else
                 f"    buffer_load_dwordx4 v[{64+(m*8+i)*4}:{64+(m*8+i)*4+3}], v1, {srds[m]}, s{60+i} offen")
pro2 = "".join(f"    s_mov_b32 s{60+i}, {i*4096}\n" for i in range(1, 8))
pro2 += "\n".join(L) + "\n"
pro2 += f"""    s_lshr_b32 s4, s43, 1                   ; pair
    s_and_b32 s5, s43, 1                    ; half
    s_lshl_b32 s6, s2, 1
    s_add_u32 s6, s6, s4
    s_mul_i32 s6, s6, {NS*6656}
"""
pro2 += f"    s_mov_b32 s50, s6\n    s_add_u32 s51, s6, 6656\n    s_mov_b32 s52, 0x40000000\n    s_mov_b32 s53, {NS//2}\n"
pro2 += f"""    v_and_b32 v2, 63, v0                    ; lane
    v_and_b32 v3, 31, v2                    ; f
    v_lshrrev_b32 v4, 5, v2                 ; h
    v_lshlrev_b32 v5, 8, v3
    v_lshl_add_u32 v{VE}, v4, 4, v5
    s_lshl_b32 s7, s5, 7
    v_add_u32 v{VO}, s7, v{VE}
    v_mov_b32 v6, 0x40000000
    v_cmp_gt_u32 vcc, 26, v3
    s_nop 1
    v_cndmask_b32 v{VO}, v6, v{VO}, vcc
    v_mov_b32 v{VNI}, 0xff800000
    v_mov_b32 v{PP+7}, 0
    s_mov_b32 s40, 0
    s_mov_b32 s41, -1
    s_mov_b32 s42, 0x3e38aa3b
"""
for m in range(4):
    pro2 += f"    s_waitcnt vmcnt({24-m*8})\n"
    for i in range(8):
        pro2 += f"    ds_write_b128 v1, v[{64+(m*8+i)*4}:{64+(m*8+i)*4+3}] offset:{0}\n".replace("offset:0", f"offset:{(m%2)*32768+i*4096}") if m < 2 else ""
    if m == 1: pro2 += "    v_add_u32 v7, 0x10000, v1\n"
    if m >= 2:
        for i in range(8):
            pro2 += f"    ds_write_b128 v7, v[{64+(m*8+i)*4}:{64+(m*8+i)*4+3}] offset:{(m%2)*32768+i*4096}\n"
pro2 += f"""    v_lshrrev_b32 v8, 4, v2                 ; group
    v_and_b32 v9, 1, v8                     ; nhalf
    v_lshrrev_b32 v8, 1, v8                 ; h
    v_bfe_u32 v10, v2, 2, 2                 ; r
    v_and_b32 v11, 3, v2                    ; c
    v_lshl_add_u32 v10, v8, 3, v10          ; row = h*8+r
    v_lshlrev_b32 v11, 3, v11
    v_lshl_add_u32 v11, v9, 5, v11
    v_lshl_add_u32 v12, v10, 7, v11         ; pitch 128
    s_lshl_b32 s7, s5, 14
    v_add_u32 v12, s7, v12
    v_add_u32 v13, 0x10000, v12             ; wv
    v_lshl_add_u32 v14, v10, 8, v11         ; pitch 256
    s_lshl_b32 s7, s5, 7
    s_add_u32 s7, s7, 0x18000
    v_add_u32 v14, s7, v14
    s_waitcnt lgkmcnt(0)
    s_barrier
"""
for (w, va, base, pitch) in ((WQ, 12, 0, 128), (WK, 12, 32768, 128), (WV, 13, 0, 128), (WR, 14, 0, 256)):
    for T in range(2):
        for kb in range(8):
            for sub in range(2):
                a = w + T*32 + kb*4 + sub*2
                pro2 += f"    ds_read_b64_tr_b16 a[{a}:{a+1}], v{va} offset:{base+(kb*16+sub*4)*pitch+T*64}\n"
pro2 += "\n".join("    " + i.txt for i in eloads(EA, "s50")) + "\n"
pro2 += "    s_waitcnt vmcnt(0) lgkmcnt(0)\n"
end = f"""L_done:
    s_endpgm
.section .rodata,"a"
.p2align 6
.amdhsa_kernel {NAME}_kernel
  .amdhsa_next_free_vgpr 512
  .amdhsa_next_free_sgpr 102
  .amdhsa_accum_offset 256
  .amdhsa_group_segment_fixed_size 0
  .amdhsa_kernarg_size 64
  .amdhsa_user_sgpr_count 2
  .amdhsa_user_sgpr_kernarg_segment_ptr 1
  .amdhsa_system_sgpr_workgroup_id_x 1
.end_amdhsa_kernel
"""
open(f"cdna_kernels/{NAME}.s", "w").write(pro + pro2 + "".join("    " + i.txt + "\n" for i, _ in fin) + end)
print(len(fin), "instrs; nops:", sum(1 for i, _ in fin if i.txt.startswith("s_nop")))
```

```python
import sys
NAME = "standalone__attention_interact_autoint__recsys"
NS = 8
FILL = int(sys.argv[1]) if len(sys.argv) > 1 else 5

class I:
    def __init__(s, txt, kind, rd=(), wr=(), srcc=()):
        s.txt, s.kind, s.rd, s.wr, s.srcc = txt, kind, set(rd), set(wr), set(srcc)
def R(p, lo, n): return [f"{p}{i}" for i in range(lo, lo+n)]
def rng(p, lo, n): return f"{p}[{lo}:{lo+n-1}]" if n > 1 else f"{p}{lo}"

def mfma(d, a, b, c):
    ctxt = "0" if c is None else rng("v", c, 16)
    rd = R(a[0], a[1], 4) + R(b[0], b[1], 4)
    sc = [] if c is None else R("v", c, 16)
    return I(f"v_mfma_f32_32x32x16_bf16 {rng('v',d,16)}, {rng(a[0],a[1],4)}, {rng(b[0],b[1],4)}, {ctxt}",
             "mfma", rd, R("v", d, 16), sc)
def valu(txt, rd, wr, kind="valu"): return I(txt, kind, [f"v{x}" for x in rd], [f"v{x}" for x in wr])
def other(txt, rd=(), wr=()): return I(txt, "other", [f"v{x}" for x in rd], [f"v{x}" for x in wr])

EA, EB = 0, 32
AQ = 64; AV = 64; AK = 96; AS = 96; AR = 128
PQ, PK, PV_, PP = 160, 176, 192, 208
PO = 216
VE, VO, VNI = 232, 233, 234
T0, T1, T2, T3, VM, VS = 235, 236, 237, 238, 239, 240
WQ, WK, WV, WR = 0, 64, 128, 192

def proj(acc, w, e, vform):
    out = []
    for T in range(2):
        for kb in range(8):
            wa = ("a", w + T*32 + kb*4); ee = ("v", e + kb*4)
            a, b = (ee, wa) if vform else (wa, ee)
            out.append(mfma(acc + T*16, a, b, None if kb == 0 else acc + T*16))
    return out
def pack(dst, acc, n=16):
    return [valu(f"v_cvt_pk_bf16_f32 v{dst+j}, v{acc+2*j}, v{acc+2*j+1}", [acc+2*j, acc+2*j+1], [dst+j]) for j in range(n)]
def s_mfma():
    return [mfma(AS, ("v", PK + 4*k), ("v", PQ + 4*k), None if k == 0 else AS) for k in range(4)]
def pv_mfma():
    out = []
    for T in range(2):
        for kb in range(2):
            out.append(mfma(AR + T*16, ("v", PV_ + T*8 + kb*4), ("v", PP + kb*4), AR + T*16))
    return out
def softmax():
    s = lambda i: AS + i
    o = []
    for i in (12, 13):
        o.append(valu(f"v_cndmask_b32 v{s(i)}, v{s(i)}, v{VNI}, s[40:41]", [s(i), VNI], [s(i)]))
    def mx3(d, a, b, c): o.append(valu(f"v_max3_f32 v{d}, v{a}, v{b}, v{c}", [a, b, c], [d]))
    mx3(T0, s(0), s(1), s(2)); mx3(T1, s(3), s(4), s(5)); mx3(T2, s(6), s(7), s(8)); mx3(T3, s(9), s(10), s(11))
    mx3(T0, T0, s(12), s(13)); mx3(T1, T1, T2, T3)
    o.append(valu(f"v_max_f32 v{VM}, v{T0}, v{T1}", [T0, T1], [VM]))
    o.append(valu(f"v_mov_b32 v{T2}, v{VM}", [VM], [T2]))
    o.append(valu(f"v_permlane32_swap_b32 v{VM}, v{T2}", [VM, T2], [VM, T2], "perm"))
    o.append(valu(f"v_max_f32 v{VM}, v{VM}, v{T2}", [VM, T2], [VM]))
    o.append(valu(f"v_mul_f32 v{VM}, s42, v{VM}", [VM], [VM]))
    for i in range(14):
        o.append(valu(f"v_fma_f32 v{s(i)}, v{s(i)}, s42, -v{VM}", [s(i), VM], [s(i)]))
        o.append(valu(f"v_exp_f32 v{s(i)}, v{s(i)}", [s(i)], [s(i)], "trans"))
    def add(d, a, b): o.append(valu(f"v_add_f32 v{d}, v{a}, v{b}", [a, b], [d]))
    add(T0, s(0), s(1)); add(T1, s(2), s(3)); add(T2, s(4), s(5)); add(T3, s(6), s(7))
    add(T0, T0, s(8)); add(T1, T1, s(9)); add(T2, T2, s(10)); add(T3, T3, s(11))
    add(T0, T0, s(12)); add(T1, T1, s(13)); add(T0, T0, T2); add(T1, T1, T3); add(VS, T0, T1)
    o.append(valu(f"v_mov_b32 v{T2}, v{VS}", [VS], [T2]))
    o.append(valu(f"v_permlane32_swap_b32 v{VS}, v{T2}", [VS, T2], [VS, T2], "perm"))
    add(VS, VS, T2)
    o.append(valu(f"v_rcp_f32 v{VS}, v{VS}", [VS], [VS], "trans"))
    for i in range(14):
        o.append(valu(f"v_mul_f32 v{s(i)}, v{VS}, v{s(i)}", [s(i), VS], [s(i)]))
    o += pack(PP, AS, 7)
    return o
def epilogue(soff):
    o = pack(PO, AR, 16)
    for j in range(16):
        o.append(valu(f"v_pk_max_i16 v{PO+j}, v{PO+j}, 0", [PO+j], [PO+j]))
    for q in range(4):
        b = PO + q*4
        o.append(valu(f"v_permlane32_swap_b32 v{b}, v{b+2}", [b, b+2], [b, b+2], "perm"))
        o.append(valu(f"v_permlane32_swap_b32 v{b+1}, v{b+3}", [b+1, b+3], [b+1, b+3], "perm"))
        o.append(I(f"buffer_store_dwordx4 v[{b}:{b+3}], v{VO}, s[24:27], {soff} offen offset:{q*32}", "store", R("v", b, 4) + [f"v{VO}"]))
    return o
def eloads(e, soff):
    return [I(f"buffer_load_dwordx4 v[{e+4*kb}:{e+4*kb+3}], v{VE}, s[8:11], {soff} offen offset:{kb*32}", "load", [f"v{VE}"], R("v", e+4*kb, 4)) for kb in range(8)]

def weave(mf, fill, skip=0):
    out = []; fill = list(fill)
    for n, m in enumerate(mf):
        out.append(m)
        if n >= skip:
            cost = 0
            while fill and cost < FILL:
                f = fill.pop(0); out.append(f); cost += 2 if f.kind == "trans" else 1
    return out, fill

E = lambda s: EA if s % 2 == 0 else EB
def one(s):
    body = []
    o, left = weave(proj(AK, WK, E(s), False), eloads(E(s+1), "s51") + pack(PQ, AQ) + epilogue("s52"), 2); body += o
    o, left = weave(proj(AV, WV, E(s), True), left + pack(PK, AK), 2); body += o
    body += left
    o, left = weave(s_mfma(), pack(PV_, AV), 0); body += o
    body += left
    o, left = weave(proj(AR, WR, E(s), False), softmax(), 1); body += o
    body.append(other("s_waitcnt vmcnt(4)"))
    o, left = weave(proj(AQ, WQ, E(s+1), False), left, 0); body += o
    body += left
    body += pv_mfma()
    body += [other("s_mov_b32 s52, s50"), other("s_mov_b32 s50, s51"), other("s_add_u32 s51, s51, 6656")]
    return body
head = proj(AQ, WQ, E(0), False)
loop = one(0) + one(1)
tail = epilogue("s52")
MARK = [other("L_loop:"), other("s_sub_u32 s53, s53, 1"), other("s_cmp_lg_u32 s53, 0"), other("s_cbranch_scc1 L_loop")]
body = head + loop + [MARK[0]] + loop + MARK[1:] + tail
def need(p, c):
    w = 0
    if p.kind == "mfma":
        if c.kind == "mfma":
            if p.wr & c.rd: w = max(w, 12)
            if p.wr & c.srcc and p.wr != c.srcc: w = max(w, 10)
        elif p.wr & (c.rd | c.wr): w = max(w, 12)
        if c.kind != "mfma" and p.srcc & c.wr: w = max(w, 7)
    elif p.kind in ("valu", "trans", "perm"):
        if c.kind == "mfma" and p.wr & (c.rd | c.srcc): w = max(w, 2)
        if c.kind == "perm" and p.wr & c.rd: w = max(w, 2)
        if p.kind == "trans" and c.kind in ("valu", "perm") and p.wr & c.rd: w = max(w, 1)
    elif p.kind == "store":
        if c.kind != "store" and p.rd & c.wr: w = max(w, 2)
    return w
fin = []
for ins in body:
    pad = 0; dist = 0
    for prev, st in reversed(fin[-16:]):
        n = need(prev, ins) if prev is not None else 0
        if n > dist: pad = max(pad, n - dist)
        dist += st
        if dist >= 12: break
    if pad:
        fin.append((other(f"s_nop {pad-1}"), pad))
    fin.append((ins, 1))

i0 = [k for k, (i, _) in enumerate(fin) if i is MARK[0]][0]
nh = [k for k, (i, _) in enumerate(fin) if i is loop[0]][0]
fin = fin[:nh] + [(other("s_nop 7"), 8)] + fin[i0:]
pro = f"""; @launch grid=(256,1,1) block=(256,1,1) lds=131072
.amdgcn_target "amdgcn-amd-amdhsa--gfx950"
.text
.globl {NAME}_kernel
.p2align 8
.type {NAME}_kernel,@function
{NAME}_kernel:
    s_cmp_ge_u32 s2, 256
    s_cbranch_scc1 L_done
    s_load_dwordx8 s[28:35], s[0:1], 0
    s_load_dwordx4 s[36:39], s[0:1], 32
    v_lshlrev_b32 v241, 4, v0                 ; tid*16
    v_lshrrev_b32 v2, 6, v0
    s_nop 0
    v_readfirstlane_b32 s43, v2
    s_waitcnt lgkmcnt(0)
    s_mov_b32 s8, s28
    s_and_b32 s9, s29, 0xffff
    s_mov_b32 s10, 27262976
    s_mov_b32 s11, 0x20000
    s_mov_b32 s24, s38
    s_and_b32 s25, s39, 0xffff
    s_mov_b32 s26, 27262976
    s_mov_b32 s27, 0x20000
    s_mov_b32 s12, s30
    s_and_b32 s13, s31, 0xffff
    s_mov_b32 s14, 32768
    s_mov_b32 s15, 0x20000
    s_mov_b32 s16, s32
    s_and_b32 s17, s33, 0xffff
    s_mov_b32 s18, 32768
    s_mov_b32 s19, 0x20000
    s_mov_b32 s20, s34
    s_and_b32 s21, s35, 0xffff
    s_mov_b32 s22, 32768
    s_mov_b32 s23, 0x20000
    s_mov_b32 s44, s36
    s_and_b32 s45, s37, 0xffff
    s_mov_b32 s46, 32768
    s_mov_b32 s47, 0x20000
"""
L = []
srds = ["s[12:15]", "s[16:19]", "s[20:23]", "s[44:47]"]
for m in range(4):
    for i in range(8):
        L.append(f"    buffer_load_dwordx4 v[{64+(m*8+i)*4}:{64+(m*8+i)*4+3}], v241, {srds[m]}, 0 offen offset:0" if i == 0 else
                 f"    buffer_load_dwordx4 v[{64+(m*8+i)*4}:{64+(m*8+i)*4+3}], v241, {srds[m]}, s{60+i} offen")
pro2 = "".join(f"    s_mov_b32 s{60+i}, {i*4096}\n" for i in range(1, 8))
pro2 += "\n".join(L) + "\n"
pro2 += f"""    s_lshr_b32 s4, s43, 1                   ; pair
    s_and_b32 s5, s43, 1                    ; half
    s_lshl_b32 s6, s2, 1
    s_add_u32 s6, s6, s4
    s_mul_i32 s6, s6, {NS*6656}
"""
pro2 += f"    s_mov_b32 s50, s6\n    s_add_u32 s51, s6, 6656\n    s_mov_b32 s52, 0x40000000\n    s_mov_b32 s53, {NS//2}\n"
pro2 += f"""    v_and_b32 v242, 63, v0                  ; lane
    v_and_b32 v243, 31, v242                ; f
    v_lshrrev_b32 v244, 5, v242             ; h
    v_lshlrev_b32 v245, 8, v243
    v_lshl_add_u32 v{VE}, v244, 4, v245
    s_lshl_b32 s7, s5, 7
    v_add_u32 v{VO}, s7, v{VE}
    v_mov_b32 v246, 0x40000000
    v_cmp_gt_u32 vcc, 26, v243
    s_nop 1
    v_cndmask_b32 v{VO}, v246, v{VO}, vcc
    v_mov_b32 v{VNI}, 0xff800000
    v_mov_b32 v{PP+7}, 0
    s_mov_b32 s40, 0
    s_mov_b32 s41, -1
    s_mov_b32 s42, 0x3e38aa3b
    v_bfe_u32 v247, v0, 4, 1
    v_lshlrev_b32 v247, 6, v247
    v_xor_b32 v247, v247, v241
    v_add_u32 v248, 0x10000, v247
    v_bfe_u32 v249, v0, 4, 2
    v_lshlrev_b32 v249, 6, v249
    v_xor_b32 v249, v249, v241
    v_add_u32 v249, 0x18000, v249
"""
pro2 += "\n".join("    " + i.txt for i in eloads(EA, "s50")) + "\n"
for m in range(4):
    pro2 += f"    s_waitcnt vmcnt({8+24-m*8})\n"
    for i in range(8):
        va, off = [(247, 0), (247, 32768), (248, 0), (249, 0)][m]
        pro2 += f"    ds_write_b128 v{va}, v[{64+(m*8+i)*4}:{64+(m*8+i)*4+3}] offset:{off+i*4096}\n"
pro2 += f"""    v_lshrrev_b32 v225, 4, v242             ; group
    v_and_b32 v226, 1, v225                 ; nhalf
    v_lshrrev_b32 v225, 1, v225             ; h
    v_bfe_u32 v227, v242, 2, 2              ; r
    v_and_b32 v228, 3, v242                 ; c
    v_lshl_add_u32 v229, v225, 3, v227      ; row = h*8+r
    v_lshlrev_b32 v228, 3, v228
    v_lshl_add_u32 v228, v226, 5, v228
    v_lshl_add_u32 v230, v229, 7, v228      ; pitch 128
    s_lshl_b32 s7, s5, 14
    v_add_u32 v230, s7, v230
    v_lshrrev_b32 v231, 1, v227
    v_lshlrev_b32 v231, 6, v231             ; swz128
    v_xor_b32 v216, v230, v231              ; T0
    v_xor_b32 v217, 64, v216                ; T1
    v_add_u32 v218, 0x10000, v216
    v_add_u32 v219, 0x10000, v217
    v_lshl_add_u32 v230, v229, 8, v228      ; pitch 256
    s_lshl_b32 s7, s5, 7
    s_add_u32 s7, s7, 0x18000
    v_add_u32 v230, s7, v230
    v_lshlrev_b32 v231, 6, v227
    v_xor_b32 v220, v230, v231
    v_xor_b32 v221, 64, v220
    s_waitcnt lgkmcnt(0)
    s_barrier
"""
for (w, va, base, pitch) in ((WQ, 216, 0, 128), (WK, 216, 32768, 128), (WV, 218, 0, 128), (WR, 220, 0, 256)):
    for T in range(2):
        for kb in range(8):
            for sub in range(2):
                a = w + T*32 + kb*4 + sub*2
                pro2 += f"    ds_read_b64_tr_b16 a[{a}:{a+1}], v{va+T} offset:{base+(kb*16+sub*4)*pitch}\n"
pro2 += "    s_waitcnt vmcnt(0) lgkmcnt(0)\n"
end = f"""L_done:
    s_endpgm
.section .rodata,"a"
.p2align 6
.amdhsa_kernel {NAME}_kernel
  .amdhsa_next_free_vgpr 512
  .amdhsa_next_free_sgpr 102
  .amdhsa_accum_offset 256
  .amdhsa_group_segment_fixed_size 0
  .amdhsa_kernarg_size 64
  .amdhsa_user_sgpr_count 2
  .amdhsa_user_sgpr_kernarg_segment_ptr 1
  .amdhsa_system_sgpr_workgroup_id_x 1
.end_amdhsa_kernel
"""
open(f"cdna_kernels/{NAME}.s", "w").write(pro + pro2 + "".join("    " + i.txt + "\n" for i, _ in fin) + end)
print(len(fin), "instrs; nops:", sum(1 for i, _ in fin if i.txt.startswith("s_nop")))
```
